```python
import torch

def _softmax(x, axis=-1):
    return torch.softmax(x, dim=axis)
def _gelu(x):
    return torch.nn.functional.gelu(x, approximate="tanh")
def _silu(x):
    return torch.nn.functional.silu(x)
def _sigmoid(x):
    return torch.sigmoid(x)
def _layernorm(x, axis=-1, eps=1e-5):
    m = x.mean(dim=axis, keepdim=True)
    v = x.var(dim=axis, keepdim=True, unbiased=False)
    return (x - m) / torch.sqrt(v + eps)
def _scatter_add(tgt, idx, src, axis=0):
    return tgt.clone().index_add_(axis, idx, src)
def _segment_sum(src, seg, n):
    out = torch.zeros((n,) + src.shape[1:], dtype=src.dtype)
    return out.index_add_(0, seg, src)
def _pad(x, pw):
    flat = tuple(v for pair in reversed(pw) for v in pair)
    return torch.nn.functional.pad(x, flat)

kernel_name = 'parallel_sum__sliding_block__dense_activation_relu__prompt'

def setup_inputs():

    _w = (lambda a: (lambda t: t.to(torch.bfloat16) if t.is_floating_point() else t)(torch.as_tensor(a)))
    def _A_setup():
        B, S, D = 1, 2048, 576
        return {
            "x": _w((lambda *s: torch.randn(*s, dtype=torch.bfloat16) * 0.05)(B, S, D)),
            "wqkv": _w((lambda *s: torch.randn(*s, dtype=torch.bfloat16) * 0.1)(D, 3 * D)),
            "wo": _w((lambda *s: torch.randn(*s, dtype=torch.bfloat16) * 0.05)(D, D)),
        }
    _A_in = _A_setup()

    def _B_setup():
        B, S, D, Dff = 1, 2048, 576, 4608
        return {
            "x": _w((lambda *s: torch.randn(*s, dtype=torch.bfloat16) * 0.05)(B, S, D)),
            "w1": _w((lambda *s: torch.randn(*s, dtype=torch.bfloat16) * 0.05)(D, Dff)),
            "w2": _w((lambda *s: torch.randn(*s, dtype=torch.bfloat16) * 0.05)(Dff, D)),
        }
    _B_in = _B_setup()

    return {
        "A_x": _A_in["x"],
        "A_wqkv": _A_in["wqkv"],
        "A_wo": _A_in["wo"],
        "B_x": _B_in["x"],
        "B_w1": _B_in["w1"],
        "B_w2": _B_in["w2"],
    }

def reference(A_x, A_wqkv, A_wo, B_x, B_w1, B_w2):
    def _A_ref(x, wqkv, wo):
        B, S, D = x.shape
        H = 32; Dh = D // H; W = 256
        qkv = (lambda x, *d: x.permute(*d))((x @ wqkv).reshape(B, S, 3, H, Dh), 2, 0, 3, 1, 4)
        q, k, v = qkv[0], qkv[1], qkv[2]
        scores = torch.einsum("bhqd,bhkd->bhqk", q, k) * (Dh ** -0.5)
        idx = torch.arange(S)
        mask = (idx[:, None] - idx[None, :] >= 0) & (idx[:, None] - idx[None, :] < W)
        scores = torch.where(mask[None, None], scores, -1e9)
        p = _softmax(scores, axis=-1)
        o = torch.einsum("bhqk,bhkd->bhqd", p, v)
        return (lambda x, *d: x.permute(*d))(o, 0, 2, 1, 3).reshape(B, S, D) @ wo

    def _B_ref(x, w1, w2):
        h = torch.einsum("bsd,df->bsf", x, w1)
        zero = torch.zeros_like(h)
        h = torch.maximum(h, zero)
        return torch.einsum("bsf,fd->bsd", h, w2)

    x = A_x
    xn = _layernorm(x, axis=-1)
    return x + _A_ref(xn, A_wqkv, A_wo) + _B_ref(xn, B_w1, B_w2)
```

```python
import re
def regs(tok):
    tok = tok.strip()
    neg = tok.startswith('-')
    if neg: tok = tok[1:]
    m = re.fullmatch(r'abs\((.*)\)', tok)
    if m: tok = m.group(1)
    m = re.fullmatch(r'([vs])(\d+)', tok)
    if m: return {(m.group(1), int(m.group(2)))}
    m = re.fullmatch(r'([vs])\[(\d+):(\d+)\]', tok)
    if m: return {(m.group(1), i) for i in range(int(m.group(2)), int(m.group(3)) + 1)}
    if tok == 'vcc': return {('s', 106), ('s', 107)}
    if tok == 'exec': return {('s', 126), ('s', 127)}
    if tok == 'm0': return {('s', 124)}
    return set()
TRANS = ('v_exp_f32', 'v_log_f32', 'v_rcp_f32', 'v_rsq_f32', 'v_sqrt_f32')
class I: pass
def parse(line):
    line = line.split(';')[0].strip()
    if not line or line.endswith(':') or line.startswith('.'): return None
    parts = line.split(None, 1)
    op = parts[0]; rest = parts[1] if len(parts) > 1 else ''
    ops = [o.strip() for o in re.split(r',(?![^\[]*\])', rest)] if rest else []
    mods = ''
    if ops:
        sp = ops[-1].split(None, 1)
        ops[-1] = sp[0]; mods = sp[1] if len(sp) > 1 else ''
    x = I(); x.op = op; x.line = line; x.mods = mods
    x.kind = 'other'; x.w = set(); x.r = set(); x.srcC = set(); x.srcAB = set(); x.stdata = set(); x.ws = 1
    if op == 's_nop': x.ws = int(ops[0], 0) + 1; x.kind = 'nop'; return x
    if op.startswith('v_mfma'):
        x.kind = 'mfma'; x.w = regs(ops[0]); x.srcAB = regs(ops[1]) | regs(ops[2]); x.srcC = regs(ops[3]); x.r = x.srcAB | x.srcC
    elif op.startswith('v_'):
        x.kind = 'valu'
        if op.startswith('v_cmp'):
            x.w = regs(ops[0]); x.r = set().union(*[regs(o) for o in ops[1:]])
        elif op.startswith('v_permlane'):
            x.w = regs(ops[0]) | regs(ops[1]); x.r = set(x.w)
        elif op.startswith('v_readfirstlane') or op.startswith('v_readlane'):
            x.w = regs(ops[0]); x.r = set().union(*[regs(o) for o in ops[1:]])
        else:
            x.w = regs(ops[0]); x.r = set().union(*[regs(o) for o in ops[1:]]) if len(ops) > 1 else set()
            if op.startswith('v_fmac') or op.startswith('v_dot2c'): x.r |= x.w
            if op.startswith('v_add_co') or op.startswith('v_addc_co'): x.w |= regs(ops[1])
        x.dpp = ('row_' in mods) or ('quad_perm' in mods)
    elif op.startswith('ds_read'):
        x.kind = 'ds'; x.w = regs(ops[0]); x.r = regs(ops[1])
    elif op.startswith('ds_write'):
        x.kind = 'ds'; x.r = set().union(*[regs(o) for o in ops])
    elif op.startswith('buffer_load') or op.startswith('global_load'):
        x.kind = 'vmem'
        if 'lds' in mods.split(): x.r = set().union(*[regs(o) for o in ops]) | {('s', 124)}; x.dma = True
        else: x.w = regs(ops[0]); x.r = set().union(*[regs(o) for o in ops[1:]])
    elif op.startswith('buffer_store'):
        x.kind = 'vmem'; x.r = set().union(*[regs(o) for o in ops])
        if 'x4' in op or 'x3' in op: x.stdata = regs(ops[0])
    elif op.startswith('global_store'):
        x.kind = 'vmem'; x.r = set().union(*[regs(o) for o in ops])
        if 'x4' in op or 'x3' in op: x.stdata = regs(ops[1])
    elif op.startswith('s_'):
        x.kind = 'salu'
        if op.startswith(('s_cmp', 's_waitcnt', 's_barrier', 's_branch', 's_cbranch', 's_endpgm', 's_sleep', 's_setprio')):
            x.r = set().union(*[regs(o) for o in ops]) if ops else set()
        else:
            x.w = regs(ops[0]); x.r = set().union(*[regs(o) for o in ops[1:]]) if len(ops) > 1 else set()
            if 'saveexec' in op: x.w |= regs('exec')
    return x
def check(lines, name=''):
    ins = [p for p in (parse(l) for l in lines) if p]
    errs = []
    for j, c in enumerate(ins):
        d = 0
        for i in range(j - 1, max(-1, j - 24), -1):
            p = ins[i]
            need = 0; why = ''
            V = lambda s: {r for r in s if r[0] == 'v'}
            S = lambda s: {r for r in s if r[0] == 's'}
            def upd(n, w):
                nonlocal need, why
                if n > need: need, why = n, w
            if p.kind == 'valu':
                if c.kind == 'mfma' and V(p.w) & c.r: upd(2, 'valu->mfma')
                if c.kind == 'valu':
                    if c.op.startswith('v_permlane') and V(p.w) & c.r: upd(2, 'valu->permlane')
                    if c.dpp and V(p.w) & c.r: upd(2, 'valu->dpp')
                    if c.op.startswith(('v_readfirstlane', 'v_readlane')) and V(p.w) & c.r: upd(1, 'valu->readlane')
                    if S(p.w) & (c.r | ({('s',106),('s',107)} if c.op.startswith('v_cndmask') and 'vcc' in c.line else set())): upd(2, 'valu sgpr->valu')
                    if p.op.startswith(TRANS) and not c.op.startswith(TRANS) and V(p.w) & c.r: upd(1, 'trans->valu')
                    if p.op.startswith('v_dot') and V(p.w) & (c.r | c.w):
                        if not (c.op == p.op and not (V(p.w) & (c.r - set()) ) ): pass
                        same = c.op == p.op
                        toks = [t.strip() for t in c.line.split(None,1)[1].split(',')]
                        if same and not (V(p.w) & (regs(toks[1]) | regs(toks[2]))): pass
                        else: upd(3, 'dot->other')
                if c.kind == 'vmem' and S(p.w) & c.r: upd(5, 'valu sgpr->vmem')
                if c.kind == 'mfma' and (('s',126) in p.w): upd(4, 'valu exec->mfma')
                if c.kind == 'salu' and S(p.w) & c.r: upd(1, 'valu sgpr->salu(pad)')
            if p.kind == 'mfma':
                if c.kind == 'mfma':
                    if p.w & c.srcAB: upd(8, 'mfma->mfma AB')
                    if p.w & c.srcC and p.w != c.srcC: upd(6, 'mfma->mfma C overlap')
                elif c.kind in ('valu', 'ds', 'vmem'):
                    if p.w & (c.r | c.w): upd(8, 'mfma->use D')
                if c.kind == 'valu' and p.srcC & c.w: upd(3, 'mfma C WAR')
            if p.kind == 'vmem' and p.stdata and c.kind in ('valu', 'mfma', 'ds', 'vmem') and p.stdata & c.w: upd(2, 'store data WAR')
            if p.kind == 'salu' and ('s', 124) in p.w and getattr(c, 'dma', False): upd(1, 'm0->dma')
            if need > d: errs.append(f"{name}: {why} need {need} have {d}: [{p.line}] -> [{c.line}]")
            d += p.ws
            if d >= 20: break
    return errs
```

```python
import sys, os, math, struct
sys.path.insert(0, os.path.dirname(os.path.abspath(__file__)))
import hazard

NAME = "parallel_sum__sliding_block__dense_activation_relu__prompt_kernel"
OPT = dict(stamps=0, PF=3, pub_bar=14, drain_bar=20, poll_bar=30, chk_bar=33, rot1=1, rot2=1, prio=0)
for a in sys.argv[2:]:
    k, v = a.split('='); OPT[k] = int(v)

SLOT = 24576
X = 5 * SLOT
KOWN = X; VOWN = X + 9216; QX = X + 18432; OEX = QX + 1024; OEXX = OEX + 8192; HAND = OEXX + 1024
HALO_K = SLOT; HALO_V = SLOT + 36864; HEX = SLOT; XN = 0
LDS_BYTES = 163840
def slot_addr(st):
    if st == 0: return 3 * SLOT
    if st == 1: return 4 * SLOT
    if st == 2: return X
    return ((st - 3) % 5) * SLOT
def wob(t): return X + (t & 1) * 9216
WS_K = 0; WS_V = 2359296; WS_FL = 2 * 2359296; WS_P = WS_FL + 32768; WS_ST = WS_P + 256 * 73728
sX = 4
SRD_Q, SRD_WO, SRD_W1, SRD_W2, SRD_K, SRD_V = 8, 12, 16, 20, 24, 28
sOUT, sDBG, sWS = 32, 34, 36
sG, sR, sW, sCG = 38, 39, 40, 41
sT0, sT1, sT2, sT3 = 42, 43, 44, 45
sM0B = 46
sSO = 47
sP1 = 48
sVAL = 57
sC2 = 58
SRD_P = 68
sQB, sW1B, sW2B, sWOB, sWOB9 = 72, 73, 74, 75, 76
sEXQ = 78
sSC = 80
sNEG = 81
sPAIR = 82
sPAIR2 = 84
sCNT = 86
sHI = 87
sST = 88
vL = 1
vTR = [2, 3, 4]
vTE0, vTE1 = 5, 6
vFR = 7
vD0, vD1, vD2, vD3 = 8, 9, 10, 11
vA0, vA1, vA2, vA3 = 12, 13, 14, 15
vAB = 16
vACC = 32
vQ = 48
vH = 56
vB = 92
vT = 236
vOF = 56
vSH = 80
vPK = 88
NEG = 0xF149F2CA

def r4(b): return f"v[{b}:{b+3}]"
def r2(b): return f"v[{b}:{b+1}]"
def sr(b, n): return f"s[{b}:{b+n-1}]"

class Em:
    def __init__(self, role):
        self.L = []; self.role = role; self.mg = 0 if role == 'D' else 1
        self.lg = []; self.lg_done = 0
        self.vm = []; self.vm_done = 0
        self.nst = 0
    def A(self, s): self.L.append(s)
    def ds(self, s, tag): self.A(s); self.lg.append(tag)
    def vmem(self, s, tag): self.A(s); self.vm.append(tag)
    def _need(self, q, done, tags, mx):
        idx = max((i for i, t in enumerate(q) if t in tags), default=-1)
        if idx < done: return None, done
        n = len(q) - 1 - idx
        if n >= mx: return None, max(done, len(q) - mx)
        return n, idx + 1
    def need(self, lg=(), vm=()):
        a, self.lg_done = self._need(self.lg, self.lg_done, set(lg), 15)
        b, self.vm_done = self._need(self.vm, self.vm_done, set(vm), 63)
        w = []
        if b is not None: w.append(f"vmcnt({b})")
        if a is not None: w.append(f"lgkmcnt({a})")
        if w: self.A("s_waitcnt " + " ".join(w))
    def lg0(self):
        if self.lg_done < len(self.lg): self.A("s_waitcnt lgkmcnt(0)"); self.lg_done = len(self.lg)
    def vm0(self): self.A("s_waitcnt vmcnt(0)"); self.vm_done = len(self.vm)
    def stamp(self):
        if OPT['stamps'] and self.nst < 7:
            self.A(f"s_memtime {sr(sST + 2*self.nst, 2)}"); self.nst += 1
    def lab(self, n): return f"L{self.role}_{n}"

    def dma_ins(self, voff, srd, sbase, const, lds, tag, sc1=False, exq=False):
        def f():
            self.A(f"s_add_u32 m0, s{sM0B}, {lds}" if not exq else f"s_mov_b32 m0, {lds}")
            if sbase is None: so = "0"
            else:
                self.A(f"s_add_u32 s{sSO}, s{sbase}, {const}"); so = f"s{sSO}"
            if exq: self.A(f"s_mov_b64 exec, {sr(sEXQ,2)}")
            elif sbase is None: self.A("s_nop 0")
            self.vmem(f"buffer_load_dwordx4 v{voff}, {sr(srd,4)}, {so} offen{' sc1' if sc1 else ''} lds", tag)
            if exq: self.A("s_mov_b64 exec, -1")
        return f
    def dma_stage(self, st):
        out = []; base = slot_addr(st); tag = ('st', st)
        if st < 12:
            p, j = divmod(st, 3)
            for i in range(6):
                c = (192 * j + 32 * i) * 3456 + (1152 * p if p < 3 else 0)
                out.append(self.dma_ins(vD0 if p < 3 else vD1, SRD_Q, sQB, c, base + i * 4096, tag))
        elif st < 39:
            t, j = divmod(st - 12, 3)
            def pre():
                self.A(f"s_lshl_b32 s{sT3}, s{sP1+t}, 7"); self.A(f"s_add_u32 s{sT3}, s{sT3}, s{sW1B}")
            for i in range(6):
                f = self.dma_ins(vD2, SRD_W1, sT3, (192 * j + 32 * i) * 9216, base + i * 4096, tag)
                out.append((lambda f=f: (pre(), f())) if i == 0 else f)
        elif st < 42:
            for i in range(6):
                n = (st - 39) * 6 + i
                srd = SRD_K if n < 9 else SRD_V
                f = self.dma_ins(vD0, srd, None, 0, base + i * 4096, tag, sc1=True)
                def g(f=f, n=n):
                    if n == 9: self.A(f"v_subrev_u32 v{vD0}, {8*4096}, v{vD0}")
                    elif n > 0: self.A(f"v_add_u32 v{vD0}, 4096, v{vD0}")
                    f()
                out.append(g)
        else:
            t, j = divmod(st - 42, 3)
            def pre():
                self.A(f"s_add_u32 s{sT3}, s{sC2+t}, s{sW2B}")
            for i in range(6):
                f = self.dma_ins(vD3, SRD_W2, sT3, (192 * j + 32 * i) * 1152, base + i * 4096, tag)
                out.append((lambda f=f: (pre(), f())) if i == 0 else f)
            if j == 2:
                for i in range(2):
                    f = self.dma_ins(vD3, SRD_WO, sT3, 32 * i * 1152, wob(t) + i * 4096, tag)
                    out.append((lambda f=f: (self.A(f"s_add_u32 s{sT3}, s{sC2+t}, s{sWOB}"), f())) if i == 0 else f)
                f = self.dma_ins(vD3, SRD_WO, sT3, 0, wob(t) + 8192, tag, exq=True)
                out.append(lambda f=f: (self.A(f"s_add_u32 s{sT3}, s{sC2+t}, s{sWOB9}"), f()))
        return out

def trb(off):
    w = min(off // 49152, 2)
    o = off - w * 49152
    assert 0 <= o < 65536
    return vTR[w], o

class KS:
    def __init__(s, st, rd, b, acc, first=False, swap=False, bt=None, xr=()):
        s.st, s.rd, s.b, s.acc, s.first, s.swap, s.bt, s.xr = st, rd, b, acc, first, swap, bt, xr

def std_rd(addr):
    b, o = trb(addr); return [(b, o), (b, o + 2048)]

def run_stream(e, ks, bar, fill_at, first_bar_done=True):
    PF = OPT['PF']; NB = 4
    fl = []
    def rd(q, h):
        k = ks[q]
        if h < len(k.rd):
            b, o = k.rd[h]; r = vAB + 4 * (q % NB) + 2 * h
            e.ds(f"ds_read_b64_tr_b16 {r2(r)}, v{b} offset:{o}", ('A', id(ks), q))
    def xr(q):
        for (dst, off, tag, kind) in ks[q].xr:
            if kind == 128: e.ds(f"ds_read_b128 {r4(dst)}, v{vFR} offset:{off}", tag)
            else: e.ds(f"ds_read_b32 v{dst}, v{vA3} offset:{off}", tag)
    def pop(n):
        for _ in range(n):
            if fl: fl.pop(0)()
    for q in range(min(PF, len(ks))):
        assert ks[q].st == ks[0].st
        xr(q); rd(q, 0); rd(q, 1)
    for q, k in enumerate(ks):
        fl.extend(fill_at.get(q, []))
        nxt = q + PF
        if nxt < len(ks) and ks[nxt].st != ks[nxt - 1].st:
            fl.extend(bar(ks[nxt].st, fl))
        e.need(lg=[('A', id(ks), q)] + ([k.bt] if k.bt else []))
        a = r4(vAB + 4 * (q % NB))
        for mt in range(2):
            b = r4(k.b + 4 * mt); acc = r4(k.acc + 4 * mt)
            c = "0" if k.first else acc
            m = lambda x, y: f"v_mfma_f32_16x16x32_bf16 {acc}, {x}, {y}, {c}"
            if k.swap == 'par': e.A((m(a, b), m(b, a)))
            else: e.A(m(b, a) if k.swap else m(a, b))
            if nxt < len(ks):
                if mt == 0: xr(nxt)
                rd(nxt, mt)
            pop(1)
    while fl: fl.pop(0)()

def gen_role(role):
    e = Em(role); A = e.A; mg = e.mg; D = role == 'D'
    A(f"{e.lab('start')}:")
    e.stamp()
    t0, t1, t2, t3 = vT, vT + 1, vT + 2, vT + 3
    A(f"v_and_b32 v{t0}, 7, v{vL}")
    A(f"v_lshrrev_b32 v{t1}, 3, v{vL}")
    A(f"s_lshl_b32 s{sT0}, s{sR}, 3"); A(f"s_add_u32 s{sT0}, s{sT0}, s{sW}"); A(f"s_mul_i32 s{sT0}, s{sT0}, {8*1152}")
    A(f"v_mul_u32_u24 v{t2}, 1152, v{t0}")
    A(f"v_lshl_add_u32 v{t2}, v{t1}, 4, v{t2}")
    A(f"v_add_u32 v{t2}, s{sT0}, v{t2}")
    for j in range(9):
        e.vmem(f"global_load_dwordx4 {r4(vB + 4*j)}, v{t2}, {sr(sX,2)} offset:{128*j}", 'x')
    A(f"v_lshrrev_b32 v{t2}, 4, v{vL}")
    if D:
        u0, u1, u2, u3, u4 = vT + 4, vT + 5, vT + 6, vT + 7, vT + 8
        A(f"v_lshrrev_b32 v{u0}, 4, v{vL}")
        A(f"v_bfe_u32 v{u1}, v{vL}, 1, 2")
        A(f"v_xor_b32 v{u1}, v{u1}, v{u0}")
        A(f"v_and_b32 v{u2}, 1, v{vL}"); A(f"v_lshlrev_b32 v{u2}, 4, v{u2}")
        A(f"s_lshl_b32 s{sT0}, s{sCG}, 3")
        A(f"v_add_u32 v{u3}, s{sT0}, v{t1}")
        A(f"v_lshl_add_u32 v{u4}, v{u1}, 5, v{u2}")
        A(f"s_movk_i32 s{sT1}, 9216"); A(f"v_mad_u32_u24 v{vD2}, v{u3}, s{sT1}, v{u4}")
        A(f"s_movk_i32 s{sT1}, 1152"); A(f"v_mad_u32_u24 v{vD3}, v{u3}, s{sT1}, v{u4}")
        A(f"v_add_u32 v{vD0}, 1, v{u1}"); A(f"v_lshrrev_b32 v{vD0}, 1, v{vD0}")
        A(f"v_lshl_add_u32 v{vD0}, v{vD0}, 3, v{u4}")
        A(f"s_movk_i32 s{sT1}, 3456"); A(f"v_mad_u32_u24 v{vD0}, v{u3}, s{sT1}, v{vD0}")
        A(f"v_bfe_u32 v{u1}, v{vL}, 2, 1"); A(f"v_lshrrev_b32 v{u2}, 1, v{u0}"); A(f"v_xor_b32 v{u1}, v{u1}, v{u2}")
        A(f"v_mul_u32_u24 v{u1}, 72, v{u1}")
        A(f"v_and_b32 v{u2}, 3, v{vL}"); A(f"v_min_u32 v{u2}, 2, v{u2}"); A(f"v_mul_u32_u24 v{u2}, 1152, v{u2}")
        A(f"v_add3_u32 v{u1}, v{u1}, v{u2}, 32")
        A(f"v_and_b32 v{u2}, 1, v{u0}"); A(f"v_lshlrev_b32 v{u2}, 3, v{u2}"); A(f"v_sub_u32 v{u1}, v{u1}, v{u2}")
        A(f"v_mad_u32_u24 v{vD1}, v{u3}, s{sT1}, v{u1}")
        for st in range(3):
            for f in e.dma_stage(st): f()
    else:
        A(f"s_lshl_b32 s{sT0}, s{sR}, 3"); A(f"s_add_u32 s{sT0}, s{sT0}, s{sG}"); A(f"s_lshl_b32 s{sT0}, s{sT0}, 7")
        A(f"s_lshl_b32 s{sT1}, s{sCG}, 2"); A(f"s_add_u32 s{sT0}, s{sT0}, s{sT1}"); A(f"s_add_u32 s{sT0}, s{sT0}, {WS_FL}")
        A(f"v_mov_b32 v{vD0}, s{sT0}")
        A(f"v_mov_b32 v{vT+4}, 0")
        A("s_mov_b64 exec, 1")
        e.vmem(f"global_store_dword v{vD0}, v{vT+4}, {sr(sWS,2)} sc1", 'clr')
        A("s_mov_b64 exec, -1")
    u0, u1, u2 = vT + 4, vT + 5, vT + 6
    A(f"v_lshrrev_b32 v{u0}, 2, v{vL}")
    A(f"v_bfe_u32 v{u1}, v{vL}, 3, 2")
    A(f"v_and_b32 v{u2}, 3, v{vL}")
    A(f"v_xor_b32 v{vTR[0]}, s{sCG}, v{u1}"); A(f"v_lshlrev_b32 v{vTR[0]}, 5, v{vTR[0]}")
    A(f"v_lshl_add_u32 v{vTR[0]}, v{u0}, 7, v{vTR[0]}"); A(f"v_lshl_add_u32 v{vTR[0]}, v{u2}, 3, v{vTR[0]}")
    A(f"v_add_u32 v{vTR[1]}, {49152}, v{vTR[0]}"); A(f"v_add_u32 v{vTR[2]}, {98304}, v{vTR[0]}")
    A(f"s_lshr_b32 s{sT0}, s{sCG}, 1")
    A(f"v_lshrrev_b32 v{vTE0}, 1, v{u1}"); A(f"v_xor_b32 v{vTE0}, s{sT0}, v{vTE0}"); A(f"v_lshlrev_b32 v{vTE0}, 6, v{vTE0}")
    A(f"v_lshl_add_u32 v{vTE0}, v{u0}, 7, v{vTE0}"); A(f"v_lshl_add_u32 v{vTE0}, v{u2}, 4, v{vTE0}")
    A(f"v_and_b32 v{u1}, 1, v{u1}"); A(f"v_lshl_add_u32 v{vTE0}, v{u1}, 3, v{vTE0}")
    A(f"v_add_u32 v{vTE0}, {SLOT}, v{vTE0}"); A(f"v_add_u32 v{vTE1}, {49152}, v{vTE0}")
    A(f"v_lshlrev_b32 v{vFR}, 4, v{vL}")
    if mg: A(f"v_add_u32 v{vFR}, {36864}, v{vFR}")
    A(f"s_lshr_b32 s{sT0}, s{sW}, 1"); A(f"s_mul_i32 s{sT0}, s{sT0}, 18432")
    A(f"s_and_b32 s{sT1}, s{sW}, 1"); A(f"s_lshl_b32 s{sT1}, s{sT1}, 7"); A(f"s_add_u32 s{sT0}, s{sT0}, s{sT1}")
    A(f"v_lshlrev_b32 v{vA0}, 4, v{t0}"); A(f"v_add_u32 v{vA0}, s{sT0}, v{vA0}")
    A(f"v_lshrrev_b32 v{u0}, 2, v{t1}"); A(f"v_lshl_add_u32 v{vA0}, v{u0}, 10, v{vA0}")
    A(f"v_and_b32 v{u0}, 1, v{t1}"); A(f"v_lshl_add_u32 v{vA0}, v{u0}, 9, v{vA0}")
    A(f"v_bfe_u32 v{u0}, v{t1}, 1, 1"); A(f"v_lshl_add_u32 v{vA0}, v{u0}, 3, v{vA0}")
    sm = [vT + 4, vT + 5]; sq = [vT + 6, vT + 7]; one = vT + 8
    A(f"v_mov_b32 v{one}, 0x3f803f80")
    for i in range(2): A(f"v_mov_b32 v{sm[i]}, 0"); A(f"v_mov_b32 v{sq[i]}, 0")
    e.need(vm=['x'])
    e.stamp()
    for i in range(36):
        A(f"v_dot2_f32_bf16 v{sm[i&1]}, v{vB+i}, v{one}, v{sm[i&1]}")
        A(f"v_dot2_f32_bf16 v{sq[i&1]}, v{vB+i}, v{vB+i}, v{sq[i&1]}")
    A("s_nop 2")
    a, b, c, d = vT + 4, vT + 6, vT + 5, vT + 7
    A(f"v_add_f32 v{a}, v{sm[0]}, v{sm[1]}"); A(f"v_add_f32 v{b}, v{sq[0]}, v{sq[1]}")
    A("s_nop 1")
    A(f"v_add_f32 v{a}, v{a}, v{a} row_ror:8"); A(f"v_add_f32 v{b}, v{b}, v{b} row_ror:8")
    for op in ("v_permlane16_swap_b32", "v_permlane32_swap_b32"):
        A(f"v_mov_b32 v{c}, v{a}"); A(f"v_mov_b32 v{d}, v{b}"); A("s_nop 1")
        A(f"{op} v{a}, v{c}"); A(f"{op} v{b}, v{d}")
        A(f"v_add_f32 v{a}, v{a}, v{c}"); A(f"v_add_f32 v{b}, v{b}, v{d}")
    inv = struct.unpack('<I', struct.pack('<f', 1.0 / 576))[0]
    A(f"v_mul_f32 v{a}, {hex(inv)}, v{a}"); A(f"v_mul_f32 v{b}, {hex(inv)}, v{b}")
    A(f"v_fma_f32 v{b}, -v{a}, v{a}, v{b}"); A(f"v_max_f32 v{b}, 0, v{b}")
    def bfr(r): A(f"v_cvt_pk_bf16_f32 v{r}, v{r}, v{r}"); A(f"v_and_b32 v{r}, s{sHI}, v{r}")
    bfr(a); bfr(b)
    A(f"v_add_f32 v{b}, 0x3727c5ac, v{b}"); bfr(b)
    A(f"v_sqrt_f32 v{b}, v{b}"); A("s_nop 0"); bfr(b)
    A(f"v_rcp_f32 v{b}, v{b}")
    for j in range(9):
        for h in range(2):
            p = [vT + 8 + 4 * h + i for i in range(4)]
            x0, x1 = vB + 4 * j + 2 * h, vB + 4 * j + 2 * h + 1
            A(f"v_lshlrev_b32 v{p[0]}, 16, v{x0}"); A(f"v_and_b32 v{p[1]}, s{sHI}, v{x0}")
            A(f"v_lshlrev_b32 v{p[2]}, 16, v{x1}"); A(f"v_and_b32 v{p[3]}, s{sHI}, v{x1}")
            for i in range(4): A(f"v_sub_f32 v{p[i]}, v{p[i]}, v{a}")
            A(f"v_cvt_pk_bf16_f32 v{x0}, v{p[0]}, v{p[1]}"); A(f"v_cvt_pk_bf16_f32 v{x1}, v{p[2]}, v{p[3]}")
            A(f"v_lshlrev_b32 v{p[0]}, 16, v{x0}"); A(f"v_and_b32 v{p[1]}, s{sHI}, v{x0}")
            A(f"v_lshlrev_b32 v{p[2]}, 16, v{x1}"); A(f"v_and_b32 v{p[3]}, s{sHI}, v{x1}")
            for i in range(4): A(f"v_mul_f32 v{p[i]}, v{p[i]}, v{b}")
            A(f"v_cvt_pk_bf16_f32 v{x0}, v{p[0]}, v{p[1]}"); A(f"v_cvt_pk_bf16_f32 v{x1}, v{p[2]}, v{p[3]}")
            e.ds(f"ds_write_b64 v{vA0}, {r2(x0)} offset:{XN + j*2048 + h*256}", 'xn')
    A(f"s_lshl_b32 s{sT0}, s{sCG}, 10")
    e.need(lg=['xn'])
    A(f"v_lshl_add_u32 v{vA0}, v{vL}, 3, s{sT0}"); A(f"v_add_u32 v{vA0}, {KOWN + mg*4608}, v{vA0}")
    A(f"v_lshl_add_u32 v{vA1}, v{vL}, 4, s{sT0}"); A(f"v_add_u32 v{vA1}, {VOWN + mg*4608}, v{vA1}")
    if D: e.need(vm=[('st', 0)])
    A("s_barrier")
    e.stamp()

    issue = {1: [3, 4, 5], 2: [6], 3: [7], 4: []}
    for j in range(5, 39): issue[j] = [j + 3]
    issue[43] = [44, 45, 46]
    for j in range(44, 66): issue[j] = [j + 3]
    pre_bar = {}; post_bar = {}
    def bar(st, fl):
        while fl: fl.pop(0)()
        for f in pre_bar.get(st, []): f()
        if D: e.need(vm=[('st', st)])
        A("s_barrier")
        out = []
        if D:
            for s2 in issue.get(st, []):
                for f in e.dma_stage(s2):
                    g = (lambda f=f: f()); g.dma = True; out.append(g)
        out += post_bar.get(st, [])
        return out

    def acc(p): return vACC + 8 * (p & 1)
    def build():
        ks = []
        for p in range(13):
            for k in range(18):
                st = 3 * p + k // 6; ad = slot_addr(st) + (k % 6) * 4096
                if p == 3:
                    o = ad - SLOT; b = vTE0 if o < 49152 else vTE1; o = o % 49152 if o >= 49152 else o
                    rd = [(b, o), (b, o + 2048)]
                else: rd = std_rd(ad)
                xr = []
                if p == 0 and k < 6:
                    for kk in (k, 6 + 2 * k, 7 + 2 * k):
                        xr += [(vB + 8 * kk + 4 * mt, XN + mt * 18432 + kk * 1024, ('B', kk), 128) for mt in range(2)]
                ks.append(KS(st, rd, vB + 8 * k, acc(p), first=(k == 0), swap=('par' if p == 3 else p == 2),
                             bt=('B', k) if p == 0 else None, xr=xr))
        return ks
    def cvt(dst, src): return lambda: A(f"v_cvt_pk_bf16_f32 v{dst}, v{src}, v{src+1}")
    def epi(p):
        a = acc(p); o = []
        if p == 0:
            for mt in range(2):
                o += [cvt(vQ + 4 * mt, a + 4 * mt), cvt(vQ + 4 * mt + 1, a + 4 * mt + 2)]
                o += [lambda mt=mt: (A(f"v_mov_b32 v{vQ+4*mt+2}, 0"), A(f"v_mov_b32 v{vQ+4*mt+3}, 0"))]
        elif p <= 3:
            t = vT + 4
            o += [cvt(t + i, a + 2 * i) for i in range(4)]
            if p == 1:
                o += [lambda mt=mt: e.ds(f"ds_write_b64 v{vA0}, {r2(t+2*mt)} offset:{512*mt}", 'rec') for mt in range(2)]
            elif p == 2:
                o += [lambda: e.ds(f"ds_write_b128 v{vA1}, {r4(t)}", 'rec')]
            else:
                def w():
                    u = vT + 8
                    A(f"s_lshr_b32 s{sT0}, s{sCG}, 1")
                    A((f"s_lshl_b32 s{sT1}, s{sT0}, 9", f"s_lshl_b32 s{sT1}, s{sT0}, 8"))
                    A((f"s_add_u32 s{sT1}, s{sT1}, {QX + 256*mg}", f"s_add_u32 s{sT1}, s{sT1}, {VOWN + mg*4608 + 4096 - 512}"))
                    A((f"s_lshl_b32 s{sT0}, s{sT0}, 8", f"v_and_b32 v{u}, 15, v{vL}"))
                    A((f"s_add_u32 s{sT0}, s{sT0}, {KOWN + mg*4608 + 4096 - 128}", f"v_lshl_add_u32 v{u}, v{u}, 6, s{sT1}"))
                    A((f"v_lshl_add_u32 v{vA2}, v{vL}, 3, s{sT1}", f"v_and_b32 v{vA2}, 48, v{vL}"))
                    A((f"s_mov_b64 exec, 0xffff0000", f"v_add_u32 v{vA2}, v{vA2}, v{u}"))
                    A((f"v_lshl_add_u32 v{vA2}, v{vL}, 3, s{sT0}", f"s_mov_b32 exec_lo, 0x0f000f00"))
                    A((f"s_mov_b64 exec, 0xffffffff", f"s_mov_b32 exec_hi, 0x0f000f00"))
                    for mt in range(2):
                        e.ds((f"ds_write_b64 v{vA2}, {r2(t+2*mt)} offset:{128*mt}", f"ds_write_b64 v{vA2}, {r2(t+2*mt)} offset:{8*mt}"), 'rec')
                    A("s_mov_b64 exec, -1")
                o.append(w)
        else:
            h = vH + 4 * (p - 4)
            o += [cvt(h + i, a + 2 * i) for i in range(4)]
            o += [lambda i=i: A(f"v_pk_max_i16 v{h+i}, v{h+i}, 0") for i in range(4)]
        return o
    pre_bar[1] = [lambda: e.need(lg=[('B', k) for k in range(18)])]
    pb = OPT['pub_bar']
    pre_bar[pb] = [lambda: e.need(lg=['rec'])]
    def qx_read():
        A(f"s_lshr_b32 s{sT0}, s{sCG}, 1"); A(f"s_lshl_b32 s{sT0}, s{sT0}, 9")
        A(f"s_and_b32 s{sT1}, s{sCG}, 1"); A(f"s_lshl_b32 s{sT1}, s{sT1}, 2"); A(f"s_add_u32 s{sT0}, s{sT0}, s{sT1}")
        A(f"s_add_u32 s{sT0}, s{sT0}, {QX + 256*mg}")
        A(f"v_lshl_add_u32 v{vA2}, v{vL}, 3, s{sT0}")
        A("s_mov_b64 exec, 0xffff")
        for mt in range(2): e.ds(f"ds_read_b32 v{vQ+4*mt+2}, v{vA2} offset:{128*mt}", 'qx')
        A("s_mov_b64 exec, -1")
    post_bar[pb] = [qx_read]
    if D:
        def halo_setup():
            A(f"s_mul_i32 s{sT0}, s{sR}, 9216"); A(f"s_sub_u32 s{sT0}, s{sT0}, {4*9216}"); A(f"s_add_u32 s{sT0}, s{sT0}, s{sM0B}")
            A(f"v_lshl_add_u32 v{vD0}, v{vL}, 4, s{sT0}")
        post_bar[pb].append(halo_setup)
    else:
        cp = vT + 8
        def copy(part):
            def f():
                if part == 0:
                    A(f"s_mul_i32 s{sT0}, s{sCG}, 2304")
                    A(f"v_lshl_add_u32 v{vD1}, v{vL}, 4, s{sT0}")
                    A(f"v_add_u32 v{vD2}, {KOWN}, v{vD1}")
                    A(f"s_lshl_b32 s{sT0}, s{sG}, 5"); A(f"s_add_u32 s{sT0}, s{sT0}, s{sR}"); A(f"s_mul_i32 s{sT0}, s{sT0}, 9216")
                    A(f"s_add_u32 s{sPAIR}, s{sWS}, s{sT0}"); A(f"s_addc_u32 s{sPAIR+1}, s{sWS+1}, 0")
                    A(f"s_add_u32 s{sPAIR2}, s{sPAIR}, {WS_V}"); A(f"s_addc_u32 s{sPAIR2+1}, s{sPAIR+1}, 0")
                for i in range(3):
                    if i == 2: A("s_mov_b64 exec, 0xffff")
                    e.ds(f"ds_read_b128 {r4(cp+4*i)}, v{vD2} offset:{part*9216 + 1024*i}", ('cp', part))
                A("s_mov_b64 exec, -1")
            def g():
                e.need(lg=[('cp', part)])
                for i in range(3):
                    if i == 2: A("s_mov_b64 exec, 0xffff")
                    e.vmem(f"global_store_dwordx4 v{vD1}, {r4(cp+4*i)}, {sr(sPAIR2 if part else sPAIR,2)} offset:{1024*i} sc1", 'pubst')
                A("s_mov_b64 exec, -1")
            return f, g
        nop = lambda: None
        f0, g0 = copy(0); f1, g1 = copy(1)
        post_bar[pb] += [f0, nop, nop, nop, g0, nop, f1, nop, nop, nop, g1]
        pre_bar[OPT['drain_bar']] = [e.vm0]
        def setflag():
            A(f"s_cmp_lg_u32 s{sW}, 4"); A(f"s_cbranch_scc1 {e.lab('nf')}")
            A(f"s_lshl_b32 s{sT0}, s{sR}, 3"); A(f"s_add_u32 s{sT0}, s{sT0}, s{sG}")
            A(f"v_mov_b32 v{vT+8}, s{sT0}"); A(f"v_mov_b32 v{vT+9}, 1")
            A("s_mov_b64 exec, 1")
            A(f"global_store_byte v{vT+8}, v{vT+9}, {sr(sDBG,2)} sc1")
            A("s_mov_b64 exec, -1")
            A(f"{e.lab('nf')}:")
        post_bar[OPT['drain_bar']] = [setflag]
        def poll_issue():
            A(f"s_cmp_lg_u32 s{sW}, 4"); A(f"s_cbranch_scc1 {e.lab('np')}")
            a, b2, c2 = vT + 8, vT + 9, vT + 10
            A(f"v_lshrrev_b32 v{a}, 1, v{vL}")
            A(f"v_sub_u32 v{b2}, s{sR}, v{a}")
            A(f"v_mov_b32 v{vD1}, 0")
            A(f"s_and_b32 s{sT0}, s{sG}, 3"); A(f"s_lshl_b32 s{sT0}, s{sT0}, 3"); A(f"s_lshl_b32 s{sT0}, 1, s{sT0}")
            A(f"s_lshr_b32 s{sT1}, s{sG}, 2")
            A(f"v_and_b32 v{c2}, 1, v{vL}")
            A(f"v_subrev_u32 v{a}, 1, v{b2}")
            A(f"v_cmp_gt_u32 vcc, 4, v{a}")
            A(f"v_cmp_eq_u32 {sr(sPAIR,2)}, s{sT1}, v{c2}")
            A("s_nop 1")
            A(f"s_and_b64 vcc, vcc, {sr(sPAIR,2)}")
            A(f"v_mov_b32 v{a}, s{sT0}")
            A(f"v_cndmask_b32 v{vD1}, v{vD1}, v{a}, vcc")
            A(f"v_cmp_eq_u32 vcc, 0, v{b2}")
            A(f"v_mov_b32 v{a}, 0x01010101"); A("s_nop 0")
            A(f"v_cndmask_b32 v{vD1}, v{vD1}, v{a}, vcc")
            A(f"v_lshlrev_b32 v{vD2}, 2, v{vL}")
            A(f"global_load_dword v{vD3}, v{vD2}, {sr(sDBG,2)} sc1")
            A(f"{e.lab('np')}:")
        post_bar[OPT['poll_bar']] = [poll_issue]
        def poll_check():
            A(f"s_cmp_lg_u32 s{sW}, 4"); A(f"s_cbranch_scc1 {e.lab('nc')}")
            A(f"s_mov_b32 s{sCNT}, 200000")
            A(f"{e.lab('pl')}:")
            A("s_waitcnt vmcnt(0)")
            A(f"v_and_b32 v{vD3}, v{vD3}, v{vD1}")
            A(f"v_cmp_ne_u32 vcc, v{vD3}, v{vD1}")
            A("s_nop 4")
            A(f"s_cbranch_vccz {e.lab('nc')}")
            A(f"s_sub_u32 s{sCNT}, s{sCNT}, 1"); A(f"s_cbranch_scc1 {e.lab('nc')}")
            A("s_sleep 2")
            A(f"global_load_dword v{vD3}, v{vD2}, {sr(sDBG,2)} sc1")
            A(f"s_branch {e.lab('pl')}")
            A(f"{e.lab('nc')}:")
        pre_bar[OPT['chk_bar']] = [poll_check]


    ks = build()
    fill = {}
    for p in range(12): fill[18 * (p + 1) + 2] = epi(p)
    run_stream(e, ks, bar, fill)
    e.stamp()
    vKm, vKx, vVm, vVx = vA0, vA1, vA2, vA3
    TLE, TGT, CM = vACC + 8, vACC + 12, vT + 4
    u0, u1 = vT, vT + 1
    A(f"s_lshl_b32 s{sT0}, s{sCG}, 10")
    A(f"v_lshl_add_u32 v{vKm}, v{vL}, 3, s{sT0}")
    A(f"v_lshl_add_u32 v{vVm}, v{vL}, 4, s{sT0}")
    A(f"v_and_b32 v{u0}, 15, v{vL}")
    A(f"s_lshr_b32 s{sT0}, s{sCG}, 1"); A(f"s_lshl_b32 s{sT0}, s{sT0}, 8"); A(f"s_add_u32 s{sT0}, s{sT0}, 4096")
    A(f"s_and_b32 s{sT1}, s{sCG}, 1"); A(f"s_lshl_b32 s{sT2}, s{sT1}, 2"); A(f"s_add_u32 s{sT2}, s{sT2}, s{sT0}")
    A(f"v_lshl_add_u32 v{vKx}, v{u0}, 3, s{sT2}")
    A(f"s_lshl_b32 s{sT1}, s{sT1}, 7"); A(f"s_add_u32 s{sT1}, s{sT1}, s{sT0}")
    A(f"v_lshl_add_u32 v{vVx}, v{u0}, 6, s{sT1}")
    A(f"v_and_b32 v{u1}, 48, v{vL}"); A(f"v_add_u32 v{vVx}, v{vVx}, v{u1}")
    for r_, base in ((vKm, KOWN), (vKx, KOWN), (vVm, VOWN), (vVx, VOWN)):
        A(f"v_add_u32 v{r_}, {base}, v{r_}")
    for f in epi(12): f()
    A(f"v_lshrrev_b32 v{u1}, 2, v{u1}")
    A(f"s_lshl_b32 s{sVAL}, s{sR}, 1")
    if mg: A(f"s_add_u32 s{sVAL}, s{sVAL}, 1")
    A(f"s_cmp_ge_u32 s{sVAL}, 8"); A(f"s_cselect_b32 s{sT0}, 0, s{sNEG}")
    A(f"v_mov_b32 v{vT+2}, s{sNEG}"); A(f"v_mov_b32 v{vT+3}, s{sT0}")
    for i in range(4):
        A(f"v_add_u32 v{vT+12}, {i}, v{u1}")
        A(f"v_cmp_le_u32 vcc, v{vT+12}, v{u0}"); A("s_nop 1")
        A(f"v_cndmask_b32 v{TLE+i}, v{vT+2}, 0, vcc")
        A(f"v_cndmask_b32 v{TGT+i}, v{vT+3}, v{vT+2}, vcc")
    e.lg0()
    if D: e.need(vm=[('st', 40)])
    A("s_barrier")
    fl = []
    if D:
        for s2 in (42, 43): fl += e.dma_stage(s2)
    def pop(n=1):
        for _ in range(n):
            if fl: fl.pop(0)()
    order = [b for b in range(8, -1, -1)]
    def rec(blk, halo, own):
        u = blk + mg
        return (own, (u - 8) * 4608, True) if u >= 8 else (halo, u * 4608, False)
    def S(blk, qt, kt): return vB + (blk * 2 + qt) * 8 + 4 * kt
    def tiles(blk):
        return [(kt, qt) for kt in range(2) for qt in range(2) if not ((blk == 8 and kt == 1 and qt == 0) or (blk == 0 and kt == 0 and qt == 1))]
    moved = [False]
    def kread(n):
        blk, kt = order[n // 2], n % 2
        _, off, own = rec(blk, HALO_K, KOWN)
        if not own and not moved[0]:
            moved[0] = True
            A(f"v_subrev_u32 v{vKm}, {KOWN - HALO_K}, v{vKm}"); A(f"v_subrev_u32 v{vKx}, {KOWN - HALO_K}, v{vKx}")
        r_ = vAB + 4 * (n % 4)
        e.ds(f"ds_read_b64 {r2(r_)}, v{vKm} offset:{off + 512*kt}", ('K', n))
        e.ds(f"ds_read_b32 v{r_+2}, v{vKx} offset:{off + 128*kt}", ('K', n))
    mx = [[vT + 12, vT + 13], [vT + 14, vT + 15]]
    started = [[False, False], [False, False]]
    def maxops(blk):
        o = []
        for (kt, qt) in tiles(blk):
            s_ = S(blk, qt, kt)
            for h in range(2):
                m = mx[qt][h]
                if started[qt][h]: o.append(f"v_max3_f32 v{m}, v{s_+2*h}, v{s_+2*h+1}, v{m}")
                else: o.append(f"v_max_f32 v{m}, v{s_+2*h}, v{s_+2*h+1}"); started[qt][h] = True
        return o
    e.need(lg=['qx'])
    for n in range(3): kread(n)
    pend = []
    for bi, blk in enumerate(order):
        cm = CM + 4 * (bi & 1)
        if blk != 8:
            A(f"s_cmp_ge_u32 s{sVAL}, {8 - blk}"); A(f"s_cselect_b32 s{sT0}, 0, s{sNEG}")
            for i in range(4): A(f"v_mov_b32 v{cm+i}, s{sT0}")
        for kt in range(2):
            n = 2 * bi + kt
            if n + 3 < 18: kread(n + 3)
            e.need(lg=[('K', n)])
            for qt in range(2):
                if (kt, qt) not in tiles(blk): continue
                if blk == 8: c = r4(TLE) if kt == qt else "0"
                elif blk == 0 and kt == qt: c = r4(TGT)
                else: c = r4(cm)
                A(f"v_mfma_f32_16x16x32_bf16 {r4(S(blk,qt,kt))}, {r4(vAB + 4*(n%4))}, {r4(vQ + 4*qt)}, {c}")
                for _ in range(2):
                    if pend: A(pend.pop(0))
                pop()
        if bi >= 1: pend += maxops(order[bi - 1])
    while pend: A(pend.pop(0))
    while fl: pop()
    vO = vACC
    for i in range(4): A(f"v_mov_b32 v{vAB+4+i}, 0x3f803f80"); A(f"v_mov_b32 v{vAB+12+i}, 0x3f803f80")
    for s_ in maxops(order[-1]): A(s_)
    for qt in range(2): A(f"v_max_f32 v{mx[qt][0]}, v{mx[qt][0]}, v{mx[qt][1]}")
    for op in ("v_permlane16_swap_b32", "v_permlane32_swap_b32"):
        for qt in range(2): A(f"v_mov_b32 v{mx[qt][1]}, v{mx[qt][0]}")
        A("s_nop 1")
        for qt in range(2): A(f"{op} v{mx[qt][0]}, v{mx[qt][1]}")
        for qt in range(2): A(f"v_max_f32 v{mx[qt][0]}, v{mx[qt][0]}, v{mx[qt][1]}")
    for qt in range(2): A(f"v_mul_f32 v{mx[qt][0]}, s{sSC}, v{mx[qt][0]}")
    if D: e.need(vm=[('st', 41)])
    A("s_barrier")
    movedv = [False]
    def vread(bi):
        blk = order[bi]
        _, off, own = rec(blk, HALO_V, VOWN)
        if not own and not movedv[0]:
            movedv[0] = True
            A(f"v_subrev_u32 v{vVm}, {VOWN - HALO_V}, v{vVm}"); A(f"v_subrev_u32 v{vVx}, {VOWN - HALO_V}, v{vVx}")
        r_ = vAB + 8 * (bi & 1)
        e.ds(f"ds_read_b128 {r4(r_)}, v{vVm} offset:{off}", ('V', bi))
        A("s_mov_b32 exec_lo, 0x00030003"); A("s_mov_b32 exec_hi, 0x00030003")
        e.ds(f"ds_read_b128 {r4(r_+4)}, v{vVx} offset:{off}", ('V', bi))
        A("s_mov_b64 exec, -1")
    def expops(blk):
        o = []
        for qt in range(2):
            base = S(blk, qt, 0)
            for kt in range(2):
                if (kt, qt) in tiles(blk):
                    s_ = S(blk, qt, kt)
                    o += [f"v_fma_f32 v{s_+i}, v{s_+i}, s{sSC}, -v{mx[qt][0]}" for i in range(4)]
                    o += [f"v_exp_f32 v{s_+i}, v{s_+i}" for i in range(4)]
            for kt in range(2):
                s_ = S(blk, qt, kt)
                if (kt, qt) in tiles(blk):
                    o += [f"v_cvt_pk_bf16_f32 v{base+2*kt+h}, v{s_+2*h}, v{s_+2*h+1}" for h in range(2)]
                else:
                    o += [f"v_mov_b32 v{base+2*kt+h}, 0" for h in range(2)]
        return o
    vread(0)
    for s_ in expops(order[0]): A(s_)
    for bi, blk in enumerate(order):
        nxt = expops(order[bi + 1]) if bi + 1 < 9 else ["s_nop 1"]
        per = -(-len(nxt) // 4)
        A(nxt.pop(0)) if bi + 1 >= 9 else None
        e.need(lg=[('V', bi)])
        first = True
        for qt in range(2):
            for h in range(2):
                if first and nxt:
                    A(nxt.pop(0)); A(nxt.pop(0))
                first = False
                o_ = r4(vO + 8 * h + 4 * qt)
                A(f"v_mfma_f32_16x16x32_bf16 {o_}, {r4(vAB + 8*(bi&1) + 4*h)}, {r4(S(blk,qt,0))}, {o_ if bi else '0'}")
                if qt == 0 and h == 0 and bi + 1 < 9: vread(bi + 1)
                for _ in range(per):
                    if nxt: A(nxt.pop(0))
        while nxt: A(nxt.pop(0))
    vHW, vOW, vOX = vA0, vA1, vA2
    A(f"s_lshr_b32 s{sT0}, s{sCG}, 1"); A(f"s_lshl_b32 s{sT1}, s{sT0}, 10")
    A(f"s_and_b32 s{sT2}, s{sCG}, 1"); A(f"s_lshl_b32 s{sT2}, s{sT2}, 3")
    A(f"s_add_u32 s{sT1}, s{sT1}, s{sT2}"); A(f"s_add_u32 s{sT1}, s{sT1}, {HEX + mg*36864}")
    A(f"v_lshl_add_u32 v{vHW}, v{vL}, 4, s{sT1}")
    A(f"s_lshl_b32 s{sT1}, s{sT0}, 11"); A(f"s_add_u32 s{sT1}, s{sT1}, s{sT2}"); A(f"s_add_u32 s{sT1}, s{sT1}, {OEX + mg*4096}")
    A(f"v_lshl_add_u32 v{vOW}, v{vL}, 4, s{sT1}")
    A(f"s_lshl_b32 s{sT1}, s{sCG}, 2"); A(f"s_add_u32 s{sT1}, s{sT1}, {OEXX + mg*512}")
    A(f"v_lshl_add_u32 v{vOX}, v{vL}, 4, s{sT1}")
    A("s_barrier")
    for t in range(9):
        A(f"s_lshl_b32 s{sT0}, s{sP1+t}, 11")
        A(f"v_add_u32 v{vT+(t&1)}, s{sT0}, v{vHW}")
        for mt in range(2): e.ds(f"ds_write_b64 v{vT+(t&1)}, {r2(vH + 4*t + 2*mt)} offset:{18432*mt}", 'hw')
    for qt in range(2): A(f"v_rcp_f32 v{vT+2+qt}, v{vO+8+4*qt+2}")
    A("s_nop 0")
    for qt in range(2):
        for i in range(4): A(f"v_mul_f32 v{vO+4*qt+i}, v{vO+4*qt+i}, v{vT+2+qt}")
        for i in range(2): A(f"v_mul_f32 v{vO+8+4*qt+i}, v{vO+8+4*qt+i}, v{vT+2+qt}")
        A(f"v_cvt_pk_bf16_f32 v{vO+4*qt}, v{vO+4*qt}, v{vO+4*qt+1}"); A(f"v_cvt_pk_bf16_f32 v{vO+4*qt+1}, v{vO+4*qt+2}, v{vO+4*qt+3}")
        A(f"v_cvt_pk_bf16_f32 v{vO+8+4*qt}, v{vO+8+4*qt}, v{vO+8+4*qt+1}")
        e.ds(f"ds_write_b64 v{vOW}, {r2(vO+4*qt)} offset:{1024*qt}", 'hw')
    A("s_mov_b64 exec, 0xffff")
    for qt in range(2): e.ds(f"ds_write_b32 v{vOX}, v{vO+8+4*qt} offset:{256*qt}", 'hw')
    A("s_mov_b64 exec, -1")
    A(f"v_add_u32 v{vFR}, {HEX}, v{vFR}")
    A(f"v_xor_b32 v{vTE0}, 64, v{vTR[2]}")
    u0, u1, u2 = vT + 4, vT + 5, vT + 6
    A(f"v_lshrrev_b32 v{u0}, 4, v{vL}")
    A(f"v_lshrrev_b32 v{u1}, 1, v{u0}"); A(f"v_mul_u32_u24 v{u1}, 36, v{u1}")
    A(f"v_and_b32 v{u0}, 1, v{u0}"); A(f"v_lshl_add_u32 v{u1}, v{u0}, 1, v{u1}")
    A(f"v_bfe_u32 v{u0}, v{vL}, 2, 2"); A(f"v_add3_u32 v{u1}, v{u1}, v{u0}, 16")
    A(f"v_bfe_u32 v{u0}, v{u1}, 1, 2"); A(f"v_xor_b32 v{u0}, s{sCG}, v{u0}"); A(f"v_lshlrev_b32 v{u0}, 5, v{u0}")
    A(f"v_lshl_add_u32 v{u0}, v{u1}, 7, v{u0}")
    A(f"v_and_b32 v{u2}, 3, v{vL}"); A(f"v_lshl_add_u32 v{u0}, v{u2}, 3, v{u0}")
    A(f"v_add_u32 v{vTE1}, {98304}, v{u0}")
    A(f"v_and_b32 v{u0}, 15, v{vL}"); A(f"v_lshlrev_b32 v{u0}, 4, v{u0}")
    A(f"v_lshrrev_b32 v{u1}, 4, v{vL}"); A(f"v_lshl_add_u32 v{u0}, v{u1}, 2, v{u0}")
    A(f"v_add_u32 v{vA3}, {OEXX + mg*512}, v{u0}")
    A(f"s_lshl_b32 s{sT0}, s{sCG}, 10"); A(f"s_add_u32 s{sT0}, s{sT0}, {HAND}")
    e.lg0()
    A(f"v_lshl_add_u32 v{vA0}, v{vL}, 4, s{sT0}")
    A(f"s_lshl_b32 s{sT0}, s{sW}, 10"); A(f"v_lshl_add_u32 v{vA1}, v{vL}, 4, s{sT0}")
    if not D: A(f"v_subrev_u32 v{vA2}, 4096, v{vA1}")
    for mt in range(2):
        for i in range(1, 4): A(f"v_mov_b32 v{vOF+16+4*mt+i}, 0")
    if D: e.need(vm=[('st', 42)])
    A("s_barrier")
    e.stamp()
    def acc2(t): return vSH if t == 0 else vACC + 8 * (t & 1)
    ofs = OEX + mg * 4096 - (HEX + mg * 36864)
    ks = []
    for t in range(9):
        for k in range(21):
            st = 42 + 3 * t + min(k // 6, 2)
            w_ = wob(t) - 98304
            if k < 18: rd = std_rd(slot_addr(st) + (k % 6) * 4096); b = vB + 8 * k
            elif k == 18: rd = [(vTR[2], w_), (vTE0, w_ + 20 * 128)]; b = vOF
            elif k == 19: rd = [(vTE0, w_ + 36 * 128), (vTR[2], w_ + 56 * 128)]; b = vOF + 8
            else: rd = [(vTE1, w_)]; b = vOF + 16
            xr = []
            if t == 0 and k < 6:
                for kk in (k, 6 + 2 * k, 7 + 2 * k):
                    xr += [(vB + 8 * kk + 4 * mt, mt * 18432 + kk * 1024, ('H', kk), 128) for mt in range(2)]
            ks.append(KS(st, rd, b, acc2(t), first=(k == 0), bt=('H', k) if t == 0 else None, xr=xr))
    def oread():
        A(f"v_lshlrev_b32 v{vT}, 4, v{vL}"); A(f"v_add_u32 v{vT}, {OEX + mg*4096}, v{vT}")
        for kk in range(2):
            for mt in range(2): e.ds(f"ds_read_b128 {r4(vOF + 8*kk + 4*mt)}, v{vT} offset:{2048*kk + 1024*mt}", ('H', 18 + kk))
        for mt in range(2): e.ds(f"ds_read_b32 v{vOF+16+4*mt}, v{vA3} offset:{256*mt}", ('H', 20))
    pre_bar[43] = [lambda: e.need(lg=[('H', k) for k in range(18)])]
    fill = {8: [oread]}
    for t in range(8):
        a = acc2(t)
        o = [cvt(vPK + i, a + 2 * i) for i in range(4)]
        st1 = 42 + 3 * (t + 1) + 1
        if D:
            o.append(lambda: e.ds(f"ds_write_b128 v{vA0}, {r4(vPK)}", 'hand'))
            pre_bar.setdefault(st1, []).append(lambda: e.need(lg=['hand']))
        else:
            def st_own(t=t):
                A(f"s_lshl_b32 s{sT0}, s{sC2+t}, 6"); A(f"s_mul_i32 s{sT1}, s{sG}, 73728"); A(f"s_add_u32 s{sT2}, s{sT0}, s{sT1}")
                e.vmem(f"buffer_store_dwordx4 {r4(vPK)}, v{vA1}, {sr(SRD_P,4)}, s{sT2} offen sc1", 'pst')
            o.append(st_own)
            def rd_p(): e.ds(f"ds_read_b128 {r4(vT+4)}, v{vA0}", 'handr')
            def st_p():
                e.need(lg=['handr'])
                e.vmem(f"buffer_store_dwordx4 {r4(vT+4)}, v{vA2}, {sr(SRD_P,4)}, s{sT2} offen sc1", 'pst')
            nop = lambda: None
            post_bar.setdefault(st1, []).extend([rd_p, nop, nop, nop, st_p])
        fill[21 * (t + 1) + 2] = o
    run_stream(e, ks, bar, fill)
    e.stamp()
    if not D:
        e.vm0()
        A(f"v_mov_b32 v{vT}, 1"); A("s_mov_b64 exec, 1")
        A(f"global_store_dword v{vD0}, v{vT}, {sr(sWS,2)} sc1")
        A("s_mov_b64 exec, -1")
    vo = vT + 1
    A(f"v_and_b32 v{vT}, 15, v{vL}"); A(f"v_mul_u32_u24 v{vT}, 1152, v{vT}")
    A(f"v_lshrrev_b32 v{vo}, 4, v{vL}"); A(f"v_lshl_add_u32 v{vT}, v{vo}, 3, v{vT}")
    A(f"s_lshl_b32 s{sT0}, s{sR}, 1"); A(f"s_add_u32 s{sT0}, s{sT0}, {mg}"); A(f"s_mul_i32 s{sT0}, s{sT0}, {32*1152}")
    A(f"s_lshl_b32 s{sT1}, s{sCG}, 5"); A(f"s_add_u32 s{sT0}, s{sT0}, s{sT1}")
    A(f"v_add_u32 v{vT}, s{sT0}, v{vT}")
    A(f"v_add_u32 v{vo}, s{sC2+8}, v{vT}"); A(f"v_add_u32 v{vo+1}, 18432, v{vo}")
    xr_ = vT + 4
    for mt in range(2): A(f"global_load_dwordx2 {r2(xr_+2*mt)}, v{vo+mt}, {sr(sX,2)}")
    A(f"s_lshl_b32 s{sT0}, s{sR}, 10"); A(f"s_lshl_b32 s{sT1}, s{sCG}, 2"); A(f"s_add_u32 s{sT0}, s{sT0}, s{sT1}"); A(f"s_add_u32 s{sT0}, s{sT0}, {WS_FL}")
    A(f"v_and_b32 v{vT+8}, 7, v{vL}"); A(f"v_lshl_add_u32 v{vT+8}, v{vT+8}, 7, s{sT0}")
    A(f"s_mov_b32 s{sCNT}, 200000")
    A(f"{e.lab('fp')}:")
    A(f"global_load_dword v{vT+9}, v{vT+8}, {sr(sWS,2)} sc1")
    A("s_waitcnt vmcnt(0)")
    A(f"v_cmp_ne_u32 vcc, 1, v{vT+9}"); A("s_nop 4")
    A(f"s_cbranch_vccz {e.lab('fq')}")
    A(f"s_sub_u32 s{sCNT}, s{sCNT}, 1"); A(f"s_cbranch_scc0 {e.lab('fp')}")
    A(f"{e.lab('fq')}:")
    e.stamp()
    def final(a, cgs, vof, xq, pbase):
        for dd in range(1, 8):
            A(f"s_add_u32 s{sT0}, s{sG}, {dd}"); A(f"s_and_b32 s{sT0}, s{sT0}, 7"); A(f"s_mul_i32 s{sT0}, s{sT0}, 73728"); A(f"s_add_u32 s{sT0}, s{sT0}, s{cgs}")
            A(f"buffer_load_dwordx4 {r4(pbase + 4*(dd-1))}, v{vA1}, {sr(SRD_P,4)}, s{sT0} offen sc1")
    def reduce(a, vof, xq, pbase, nout):
        p = [vT + 12 + i for i in range(4)]
        def addp(src, dst):
            A(f"v_lshlrev_b32 v{p[0]}, 16, v{src}"); A(f"v_and_b32 v{p[1]}, s{sHI}, v{src}")
            A(f"v_lshlrev_b32 v{p[2]}, 16, v{src+1}"); A(f"v_and_b32 v{p[3]}, s{sHI}, v{src+1}")
            for i in range(4): A(f"v_add_f32 v{dst+i}, v{dst+i}, v{p[i]}")
        for dd in range(7):
            A(f"s_waitcnt vmcnt({nout + 6 - dd})")
            for mt in range(2): addp(pbase + 4 * dd + 2 * mt, a + 4 * mt)
        for mt in range(2):
            addp(xq + 2 * mt, a + 4 * mt)
            A(f"v_cvt_pk_bf16_f32 v{a+4*mt}, v{a+4*mt}, v{a+4*mt+1}"); A(f"v_cvt_pk_bf16_f32 v{a+4*mt+1}, v{a+4*mt+2}, v{a+4*mt+3}")
            A(f"global_store_dwordx2 v{vof+mt}, {r2(a+4*mt)}, {sr(sOUT,2)}")
    A(f"s_lshl_b32 s{sT3}, s{sC2+8}, 6")
    final(acc2(8), sT3, vo, xr_, vB)
    A(f"s_cmp_lg_u32 s{sW}, s{sG}"); A(f"s_cbranch_scc1 {e.lab('noshare')}")
    A(f"v_add_u32 v{vT+10}, 1024, v{vT}"); A(f"v_add_u32 v{vT+11}, 18432, v{vT+10}")
    for mt in range(2): A(f"global_load_dwordx2 {r2(vB+64+2*mt)}, v{vT+10+mt}, {sr(sX,2)}")
    A(f"s_mov_b32 s{sT3}, 65536")
    final(vSH, sT3, vT + 10, vB + 64, vB + 32)
    reduce(acc2(8), vo, xr_, vB, 9)
    reduce(vSH, vT + 10, vB + 64, vB + 32, 2)
    A(f"s_branch {e.lab('end')}")
    A(f"{e.lab('noshare')}:")
    reduce(acc2(8), vo, xr_, vB, 0)
    A(f"{e.lab('end')}:")
    if OPT['stamps']:
        e.stamp()
        A("s_waitcnt lgkmcnt(0)")
        A(f"s_cmp_lg_u32 s{sCG}, 0"); A(f"s_cbranch_scc1 {e.lab('fin')}")
        A(f"s_lshl_b32 s{sT0}, s2, 7"); A(f"s_add_u32 s{sT0}, s{sT0}, {WS_ST + mg*64}")
        A(f"v_mov_b32 v{vT}, s{sT0}"); A("s_mov_b64 exec, 1")
        for i in range(e.nst):
            A(f"v_mov_b32 v{vT+1}, s{sST+2*i}")
            A(f"global_store_dword v{vT}, v{vT+1}, {sr(sWS,2)} offset:{4*i}")
        A(f"s_memrealtime {sr(sST,2)}"); A("s_waitcnt lgkmcnt(0)")
        A(f"v_mov_b32 v{vT+1}, s{sST}"); A(f"global_store_dword v{vT}, v{vT+1}, {sr(sWS,2)} offset:32")
        A(f"v_mov_b32 v{vT+1}, s3"); A(f"global_store_dword v{vT}, v{vT+1}, {sr(sWS,2)} offset:36")
        A(f"{e.lab('fin')}:")
    A("s_endpgm")
    return e

def expand(e):
    L = e.L
    idx = [i for i, x in enumerate(L) if isinstance(x, tuple)]
    a, b = idx[0], idx[-1] + 1
    v = lambda k: [x[k] if isinstance(x, tuple) else x for x in L[a:b]]
    assert not any(x.endswith(':') for x in v(0))
    out = L[:a] + [f"s_bitcmp1_b32 s{sCG}, 0", f"s_cbranch_scc1 {e.lab('odd')}"] + v(0) + [f"s_branch {e.lab('join')}", f"{e.lab('odd')}:"] + v(1) + [f"{e.lab('join')}:"] + L[b:]
    return out, [L[:a] + v(0) + L[b:], L[:a] + v(1) + L[b:]]

def main():
    hdr = open(os.path.join(os.path.dirname(os.path.abspath(__file__)), "header.txt")).read().rstrip("\n").split("\n")
    L = list(hdr); A = L.append
    A(f"; @launch grid=(256,1,1) block=(512,1,1) lds={LDS_BYTES}")
    A('.amdgcn_target "amdgcn-amd-amdhsa--gfx950"'); A(".text"); A(f".globl {NAME}"); A(".p2align 8"); A(f".type {NAME},@function"); A(f"{NAME}:")
    P = []; B = P.append
    B("s_cmp_ge_u32 s2, 256"); B("s_cbranch_scc1 L_exit")
    B(f"s_load_dwordx2 {sr(sX,2)}, s[0:1], 0"); B(f"s_load_dwordx2 {sr(SRD_Q,2)}, s[0:1], 8"); B(f"s_load_dwordx2 {sr(SRD_WO,2)}, s[0:1], 16")
    B(f"s_load_dwordx2 {sr(SRD_W1,2)}, s[0:1], 32"); B(f"s_load_dwordx2 {sr(SRD_W2,2)}, s[0:1], 40")
    B(f"s_load_dwordx4 {sr(sOUT,4)}, s[0:1], 48"); B(f"s_load_dwordx2 {sr(sWS,2)}, s[0:1], 64")
    if OPT['stamps']: B("s_memrealtime s[6:7]")
    B(f"v_lshrrev_b32 v2, 6, v0"); B(f"v_and_b32 v{vL}, 63, v0")
    B(f"s_and_b32 s{sG}, s2, 7"); B(f"v_readfirstlane_b32 s{sW}, v2"); B(f"s_lshr_b32 s{sR}, s2, 3")
    for srd, n in ((SRD_Q, 576*1728*2), (SRD_WO, 576*576*2), (SRD_W1, 576*4608*2), (SRD_W2, 4608*576*2), (SRD_K, 32*9216), (SRD_V, 32*9216), (SRD_P, 8*73728)):
        B(f"s_mov_b32 s{srd+2}, {n}"); B(f"s_mov_b32 s{srd+3}, 0x20000")
    B(f"s_and_b32 s{sCG}, s{sW}, 3"); B(f"s_lshl_b32 s{sM0B}, s{sCG}, 10")
    B(f"s_mul_i32 s{sQB}, s{sG}, 144"); B(f"s_mul_i32 s{sW1B}, s{sG}, 1152"); B(f"s_mul_i32 s{sW2B}, s{sG}, {576*1152}")
    B(f"s_mul_i32 s{sWOB}, s{sG}, {72*1152}")
    B(f"s_mul_i32 s{sT0}, s{sCG}, {8*1152}"); B(f"s_add_u32 s{sWOB9}, s{sWOB}, {64*1152}"); B(f"s_sub_u32 s{sWOB9}, s{sWOB9}, s{sT0}")
    B(f"s_lshl_b32 s{sT0}, s{sCG}, 4"); B(f"s_mov_b64 {sr(sEXQ,2)}, 0xffff"); B(f"s_lshl_b64 {sr(sEXQ,2)}, {sr(sEXQ,2)}, s{sT0}")
    c = struct.unpack('<I', struct.pack('<f', 18 ** -0.5 * math.log2(math.e)))[0]
    B(f"s_mov_b32 s{sSC}, {hex(c)}"); B(f"s_mov_b32 s{sNEG}, {hex(NEG)}"); B(f"s_mov_b32 s{sHI}, 0xffff0000")
    if OPT['rot1']:
        B(f"s_mul_i32 s{sT0}, s{sR}, 57"); B(f"s_lshr_b32 s{sT0}, s{sT0}, 9"); B(f"s_mul_i32 s{sT0}, s{sT0}, 9"); B(f"s_sub_u32 s{sP1}, s{sR}, s{sT0}")
    else: B(f"s_mov_b32 s{sP1}, 0")
    for t in range(1, 9):
        B(f"s_add_u32 s{sP1+t}, s{sP1+t-1}, 1"); B(f"s_cmp_eq_u32 s{sP1+t}, 9"); B(f"s_cselect_b32 s{sP1+t}, 0, s{sP1+t}")
    if OPT['rot2']:
        B(f"s_mul_i32 s{sT0}, s{sR}, 37"); B(f"s_lshr_b32 s{sT0}, s{sT0}, 8"); B(f"s_mul_i32 s{sT0}, s{sT0}, 7"); B(f"s_sub_u32 s{sT0}, s{sR}, s{sT0}")
    else: B(f"s_mov_b32 s{sT0}, 0")
    B(f"s_movk_i32 s{sC2}, 1024"); B(f"s_lshl_b32 s{sC2+8}, s{sG}, 7")
    for t in range(1, 8):
        B(f"s_add_u32 s{sT1}, s{sT0}, s{sG}"); B(f"s_add_u32 s{sT1}, s{sT1}, 1"); B(f"s_and_b32 s{sT1}, s{sT1}, 7"); B(f"s_lshl_b32 s{sC2+t}, s{sT1}, 7")
        B(f"s_add_u32 s{sT0}, s{sT0}, 1"); B(f"s_cmp_eq_u32 s{sT0}, 7"); B(f"s_cselect_b32 s{sT0}, 0, s{sT0}")
    B("s_waitcnt lgkmcnt(0)")
    if OPT['stamps']: B("s_mov_b32 s3, s6")
    B(f"s_mul_i32 s{sT0}, s{sG}, {32*9216}")
    B(f"s_add_u32 s{SRD_K}, s{sWS}, s{sT0}"); B(f"s_addc_u32 s{SRD_K+1}, s{sWS+1}, 0")
    B(f"s_add_u32 s{SRD_V}, s{SRD_K}, {WS_V}"); B(f"s_addc_u32 s{SRD_V+1}, s{SRD_K+1}, 0")
    B(f"s_mul_i32 s{sT0}, s{sR}, {8*73728}"); B(f"s_add_u32 s{sT0}, s{sT0}, {WS_P}")
    B(f"s_add_u32 s{SRD_P}, s{sWS}, s{sT0}"); B(f"s_addc_u32 s{SRD_P+1}, s{sWS+1}, 0")
    B(f"s_cmp_ge_u32 s{sW}, 4"); B("s_cbranch_scc1 LS_start")
    if OPT['prio']: B("s_setprio 1")
    L += P
    errs = []
    for role in "DS":
        e = gen_role(role)
        out, lin = expand(e)
        for k, l in enumerate(lin): errs += hazard.check(P + l, f"{role}{k}")
        L += out
    A("L_exit:"); A("s_endpgm")
    A('.section .rodata,"a"'); A(".p2align 6"); A(f".amdhsa_kernel {NAME}")
    for l in ("next_free_vgpr 256", "next_free_sgpr 102", "accum_offset 256", "group_segment_fixed_size 0", "kernarg_size 72",
              "user_sgpr_count 2", "user_sgpr_kernarg_segment_ptr 1", "system_sgpr_workgroup_id_x 1", "float_denorm_mode_32 3"):
        A(f"  .amdhsa_{l}")
    A(".end_amdhsa_kernel")
    seen = set()
    for x in errs:
        if x[3:] not in seen: print("HAZARD", x, file=sys.stderr); seen.add(x[3:])
    open(sys.argv[1], "w").write("\n".join(("    " + l if not (l.startswith((';', '.')) or l.endswith(':') or l.startswith('  .')) else l) for l in L) + "\n")
    print(f"wrote {sys.argv[1]}: {len(L)} lines, {len(seen)} hazards", file=sys.stderr)
main()
```
